```python
import torch

def _softmax(x, axis=-1):
    return torch.softmax(x, dim=axis)

def _gelu(x):
    return torch.nn.functional.gelu(x, approximate='tanh')

def _silu(x):
    return torch.nn.functional.silu(x)

def _sigmoid(x):
    return torch.sigmoid(x)

def _layernorm(x, axis=-1, eps=1e-05):
    m = x.mean(dim=axis, keepdim=True)
    v = x.var(dim=axis, keepdim=True, unbiased=False)
    return (x - m) / torch.sqrt(v + eps)

def _scatter_add(tgt, idx, src, axis=0):
    return tgt.clone().index_add_(axis, idx, src)

def _segment_sum(src, seg, n):
    out = torch.zeros((n,) + src.shape[1:], dtype=src.dtype)
    return out.index_add_(0, seg, src)

def _pad(x, pw):
    flat = tuple((v for pair in reversed(pw) for v in pair))
    return torch.nn.functional.pad(x, flat)
kernel_name = 'standalone__autoregressive_conv_wavenet__speech'

def setup_inputs():

    _w = lambda a: (lambda t: t.to(torch.bfloat16) if t.is_floating_point() else t)(torch.as_tensor(a))
    B, T, D, K = (2, 4000, 256, 3)
    return {'x': _w((lambda *s: torch.randn(*s, dtype=torch.bfloat16) * 0.1)(B, T, D)), 'w': _w((lambda *s: torch.randn(*s, dtype=torch.bfloat16) * 0.1)(K, D, 2 * D)), 'w_o': _w((lambda *s: torch.randn(*s, dtype=torch.bfloat16) * 0.05)(D, D))}

def reference(x, w, w_o):
    B, T, D = x.shape
    K = w.shape[0]
    dil = 2
    pad = (K - 1) * dil
    xp = _pad(x, ((0, 0), (pad, 0), (0, 0)))
    h = torch.einsum('btc,cd->btd', xp[:, pad:pad + T, :], w[0])
    for i in range(1, K):
        off = pad - i * dil
        h = h + torch.einsum('btc,cd->btd', xp[:, off:off + T, :], w[i])
    f = h[..., :D].clone()
    g = h[..., D:].clone()
    z = torch.tanh(f) * _sigmoid(g)
    return z @ w_o
```

```python
NST = 7
XT = 0; XSTR = 528
ZT = 19008
RING = 36864
LDS_TOTAL = RING + 4*NST*4096
o = []
def e(s): o.append("    " + s)
def lab(s): o.append(s + ":")

hdr = open('standalone__autoregressive_conv_wavenet__speech.s.ref').read().split('\n')
top = [l for l in hdr if l.startswith(';') and '@launch' not in l]
o += top
o.append(f"; @launch grid=(250,1,1) block=(256,1,1) lds={LDS_TOTAL}")
o.append('.amdgcn_target "amdgcn-amd-amdhsa--gfx950"')
o.append('.text')
K = 'standalone__autoregressive_conv_wavenet__speech_kernel'
o.append(f'.globl {K}')
o.append('.p2align 8')
o.append(f'.type {K},@function')
lab(K)
e("s_cmp_ge_u32 s2, 250")
e("s_cbranch_scc1 L_done")
e("s_load_dwordx4 s[4:7], s[0:1], 0")
e("s_load_dwordx4 s[8:11], s[0:1], 16")
e("s_cmp_ge_u32 s2, 125")
e("s_cselect_b32 s3, 125, 0")
e("s_sub_u32 s28, s2, s3")
e("s_lshl_b32 s28, s28, 5")
e("s_lshl_b32 s29, s2, 5")
e("v_lshrrev_b32 v1, 6, v0")
e("s_nop 0")
e("v_readfirstlane_b32 s30, v1")
e("v_and_b32 v2, 63, v0")
e("s_waitcnt lgkmcnt(0)")
for i,(base,nb) in enumerate([(4,4096000),(6,786432),(8,131072),(10,4096000)]):
    r = 12+4*i
    e(f"s_mov_b32 s{r}, s{base}")
    e(f"s_and_b32 s{r+1}, s{base+1}, 0xffff")
    e(f"s_mov_b32 s{r+2}, {nb}")
    e(f"s_mov_b32 s{r+3}, 0x00020000")
for i in range(5):
    e(f"v_add_u32 v3, {256*i}, v0")
    e("v_lshrrev_b32 v4, 5, v3")
    e("v_and_b32 v5, 31, v3")
    e("v_add_u32 v6, s28, v4")
    e("v_cmp_gt_u32 vcc, 4, v6")
    e("v_add_u32 v6, s29, v4")
    e("v_subrev_u32 v6, 4, v6")
    e("v_cndmask_b32 v6, v6, 0, vcc")
    e("v_lshlrev_b32 v6, 9, v6")
    e("v_lshl_add_u32 v6, v5, 4, v6")
    e(f"buffer_load_dwordx4 v[{8+4*i}:{11+4*i}], v6, s[12:15], 0 offen")
e("v_lshrrev_b32 v3, 2, v2")
e("v_and_b32 v3, 7, v3")
e("v_and_b32 v4, 3, v2")
e("v_lshrrev_b32 v5, 5, v2")
e("v_lshl_add_u32 v4, v5, 2, v4")
e("v_lshlrev_b32 v4, 4, v4")
e("v_lshl_add_u32 v40, v3, 10, v4")
e("v_lshl_add_u32 v41, v3, 9, v4")
e("s_mul_i32 s31, s30, " + str(NST*4096))
e(f"s_add_u32 s31, s31, {RING}")
e("s_lshl_b32 s32, s30, 7")
e("v_lshrrev_b32 v3, 5, v2")
e("v_lshlrev_b32 v42, 10, v3")
e("v_and_b32 v3, 15, v2")
e("v_lshrrev_b32 v3, 2, v3")
e("v_lshl_add_u32 v42, v3, 6, v42")
e("v_lshrrev_b32 v3, 4, v2")
e("v_and_b32 v3, 1, v3")
e("v_lshl_add_u32 v42, v3, 5, v42")
e("v_and_b32 v3, 3, v2")
e("v_lshl_add_u32 v42, v3, 3, v42")
e("v_add_u32 v42, s31, v42")
e("v_and_b32 v3, 31, v2")
e(f"v_mul_u32_u24 v43, {XSTR}, v3")
e("v_lshrrev_b32 v3, 5, v2")
e("v_lshl_add_u32 v43, v3, 4, v43")
vm = []
for i in range(5): vm.append('x')
def dma(u):
    slot = u % NST
    if u < 48:
        for d in range(4):
            so = (16*u + 8*(d&1))*1024 + (512 if d>=2 else 0)
            e(f"s_add_u32 s33, s32, {so}")
            e(f"s_add_u32 m0, s31, {slot*4096 + d*1024}")
            e("s_nop 0")
            e("buffer_load_dwordx4 v40, s[16:19], s33 offen lds")
            vm.append(u)
    else:
        for d in range(2):
            so = (16*(u-48) + 8*d)*512
            e(f"s_add_u32 s33, s32, {so}")
            e(f"s_add_u32 m0, s31, {slot*4096 + d*1024}")
            e("s_nop 0")
            e("buffer_load_dwordx4 v41, s[20:23], s33 offen lds")
            vm.append(u)
def waitfor(tag):
    idx = max(i for i,t in enumerate(vm) if t == tag)
    n = len(vm) - 1 - idx
    e(f"s_waitcnt vmcnt({n})")
for u in range(NST-1): dma(u)
waitfor('x')
for i in range(5):
    e(f"v_add_u32 v3, {256*i}, v0")
    e("v_lshrrev_b32 v4, 5, v3")
    e("v_and_b32 v5, 31, v3")
    e("v_add_u32 v6, s28, v4")
    e("v_cmp_gt_u32 vcc, 4, v6")
    for r in range(4):
        e(f"v_cndmask_b32 v{8+4*i+r}, v{8+4*i+r}, 0, vcc")
    e(f"v_mul_u32_u24 v6, {XSTR}, v4")
    e("v_lshl_add_u32 v6, v5, 4, v6")
    if i == 4:
        e("v_cmp_gt_u32 vcc, 128, v0")
        e("s_and_saveexec_b64 s[34:35], vcc")
    e(f"ds_write_b128 v6, v[{8+4*i}:{11+4*i}] offset:{XT}")
    if i == 4:
        e("s_mov_b64 exec, s[34:35]")
e("s_waitcnt lgkmcnt(0)")
e("s_barrier")
for r in range(64,128): e(f"v_mov_b32 v{r}, 0")
FR = [128, 148]
def reads1(u):
    slot = u % NST; b = FR[u&1]; tap = (16*u)//256; kk = (16*u) % 256
    for t in range(4):
        off = slot*4096 + (2048 if t>=2 else 0) + (t&1)*512
        e(f"ds_read_b64_tr_b16 v[{b+4*t}:{b+4*t+1}], v42 offset:{off}")
        e(f"ds_read_b64_tr_b16 v[{b+4*t+2}:{b+4*t+3}], v42 offset:{off+256}")
    e(f"ds_read_b128 v[{b+16}:{b+19}], v43 offset:{XT + (4-2*tap)*XSTR + kk*2}")
def mfma1(u):
    b = FR[u&1]
    for t in range(4):
        e(f"v_mfma_f32_32x32x16_bf16 v[{64+16*t}:{79+16*t}], v[{b+4*t}:{b+4*t+3}], v[{b+16}:{b+19}], v[{64+16*t}:{79+16*t}]")
for u in range(48):
    waitfor(u)
    reads1(u)
    if u > 0: mfma1(u-1)
    e("s_waitcnt lgkmcnt(0)")
    if u + NST - 1 < 64: dma(u+NST-1)
mfma1(47)
e("s_nop 7"); e("s_nop 7")
e("v_mov_b32 v3, 0x4038aa3b")
e("v_mov_b32 v4, 0xbfb8aa3b")
e("v_lshrrev_b32 v5, 5, v2")
e("v_and_b32 v6, 31, v2")
e(f"v_mul_u32_u24 v6, {XSTR}, v6")
e("v_lshl_add_u32 v6, v5, 3, v6")
e("v_add_u32 v6, s32, v6")
for a in range(2):
    for r in range(16):
        F = 64+16*a+r; G = 96+16*a+r
        e(f"v_mul_f32 v8, v3, v{F}")
        e(f"v_mul_f32 v9, v4, v{G}")
        e("v_exp_f32 v8, v8")
        e("v_exp_f32 v9, v9")
        e("s_nop 0")
        e("v_add_f32 v8, 1.0, v8")
        e("v_add_f32 v9, 1.0, v9")
        e("v_rcp_f32 v8, v8")
        e("v_rcp_f32 v9, v9")
        e("s_nop 0")
        e("v_fma_f32 v8, v8, -2.0, 1.0")
        e(f"v_mul_f32 v{F}, v8, v9")
    for q in range(4):
        b = 64+16*a+4*q
        e(f"v_cvt_pk_bf16_f32 v8, v{b}, v{b+1}")
        e(f"v_cvt_pk_bf16_f32 v9, v{b+2}, v{b+3}")
        e(f"ds_write_b64 v6, v[8:9] offset:{ZT + (32*a+8*q)*2}")
        e("s_nop 1")
e("s_waitcnt lgkmcnt(0)")
e("s_barrier")
for r in range(64,96): e(f"v_mov_b32 v{r}, 0")
e(f"v_add_u32 v43, {ZT}, v43")
def reads2(u):
    slot = u % NST; b = FR[u&1]; s2_ = u-48
    for t in range(2):
        off = slot*4096 + t*512
        e(f"ds_read_b64_tr_b16 v[{b+4*t}:{b+4*t+1}], v42 offset:{off}")
        e(f"ds_read_b64_tr_b16 v[{b+4*t+2}:{b+4*t+3}], v42 offset:{off+256}")
    e(f"ds_read_b128 v[{b+16}:{b+19}], v43 offset:{s2_*32}")
def mfma2(u):
    b = FR[u&1]
    for t in range(2):
        e(f"v_mfma_f32_32x32x16_bf16 v[{64+16*t}:{79+16*t}], v[{b+4*t}:{b+4*t+3}], v[{b+16}:{b+19}], v[{64+16*t}:{79+16*t}]")
for u in range(48,64):
    waitfor(u)
    reads2(u)
    if u > 48: mfma2(u-1)
    e("s_waitcnt lgkmcnt(0)")
    if u + NST - 1 < 64: dma(u+NST-1)
mfma2(63)
e("s_nop 7"); e("s_nop 7")
e("v_and_b32 v6, 31, v2")
e("v_add_u32 v6, s29, v6")
e("v_lshlrev_b32 v6, 9, v6")
e("v_lshrrev_b32 v5, 5, v2")
e("v_lshl_add_u32 v6, v5, 3, v6")
e("v_add_u32 v6, s32, v6")
for a in range(2):
    for q in range(4):
        b = 64+16*a+4*q
        e(f"v_cvt_pk_bf16_f32 v{8+2*(4*a+q)}, v{b}, v{b+1}")
        e(f"v_cvt_pk_bf16_f32 v{9+2*(4*a+q)}, v{b+2}, v{b+3}")
        e(f"buffer_store_dwordx2 v[{8+2*(4*a+q)}:{9+2*(4*a+q)}], v6, s[24:27], 0 offen offset:{(32*a+8*q)*2}")
lab("L_done")
e("s_endpgm")
o.append('.section .rodata,"a"')
o.append('.p2align 6')
o.append(f'.amdhsa_kernel {K}')
o.append('  .amdhsa_next_free_vgpr 168')
o.append('  .amdhsa_next_free_sgpr 40')
o.append('  .amdhsa_accum_offset 168')
o.append('  .amdhsa_group_segment_fixed_size 0')
o.append('  .amdhsa_kernarg_size 48')
o.append('  .amdhsa_user_sgpr_count 2')
o.append('  .amdhsa_user_sgpr_kernarg_segment_ptr 1')
o.append('  .amdhsa_system_sgpr_workgroup_id_x 1')
o.append('.end_amdhsa_kernel')
open('standalone__autoregressive_conv_wavenet__speech.s','w').write('\n'.join(x for x in o if x is not None)+'\n')
```

```python
import sys
NST = int(sys.argv[1])
XT = 0; XSTR = 528
ZT = 19008
RING = 36864
LDS_TOTAL = RING + 4*NST*4096
o = []
def e(s): o.append("    " + s)
def lab(s): o.append(s + ":")

hdr = open('standalone__autoregressive_conv_wavenet__speech.s.ref').read().split('\n')
top = [l for l in hdr if l.startswith(';') and '@launch' not in l]
o += top
o.append(f"; @launch grid=(250,1,1) block=(256,1,1) lds={LDS_TOTAL}")
o.append('.amdgcn_target "amdgcn-amd-amdhsa--gfx950"')
o.append('.text')
K = 'standalone__autoregressive_conv_wavenet__speech_kernel'
o.append(f'.globl {K}')
o.append('.p2align 8')
o.append(f'.type {K},@function')
lab(K)
e("s_cmp_ge_u32 s2, 250")
e("s_cbranch_scc1 L_done")
e("s_load_dwordx4 s[4:7], s[0:1], 0")
e("s_load_dwordx4 s[8:11], s[0:1], 16")
e("s_cmp_ge_u32 s2, 125")
e("s_cselect_b32 s3, 125, 0")
e("s_sub_u32 s28, s2, s3")
e("s_lshl_b32 s28, s28, 5")
e("s_lshl_b32 s29, s2, 5")
e("v_lshrrev_b32 v1, 6, v0")
e("s_nop 0")
e("v_readfirstlane_b32 s30, v1")
e("v_and_b32 v2, 63, v0")
e("s_waitcnt lgkmcnt(0)")
for i,(base,nb) in enumerate([(4,4096000),(6,786432),(8,131072),(10,4096000)]):
    r = 12+4*i
    e(f"s_mov_b32 s{r}, s{base}")
    e(f"s_and_b32 s{r+1}, s{base+1}, 0xffff")
    e(f"s_mov_b32 s{r+2}, {nb}")
    e(f"s_mov_b32 s{r+3}, 0x00020000")
for i in range(5):
    e(f"v_add_u32 v3, {256*i}, v0")
    e("v_lshrrev_b32 v4, 5, v3")
    e("v_and_b32 v5, 31, v3")
    e("v_add_u32 v6, s28, v4")
    e("v_cmp_gt_u32 vcc, 4, v6")
    e("v_add_u32 v6, s29, v4")
    e("v_subrev_u32 v6, 4, v6")
    e("v_cndmask_b32 v6, v6, 0, vcc")
    e("v_lshlrev_b32 v6, 9, v6")
    e("v_lshl_add_u32 v6, v5, 4, v6")
    e(f"buffer_load_dwordx4 v[{8+4*i}:{11+4*i}], v6, s[12:15], 0 offen")
e("v_lshrrev_b32 v3, 2, v2")
e("v_and_b32 v3, 7, v3")
e("v_and_b32 v4, 3, v2")
e("v_lshrrev_b32 v5, 5, v2")
e("v_lshl_add_u32 v4, v5, 2, v4")
e("v_lshlrev_b32 v4, 4, v4")
e("v_lshl_add_u32 v40, v3, 10, v4")
e("v_lshl_add_u32 v41, v3, 9, v4")
e("s_mul_i32 s31, s30, " + str(NST*4096))
e(f"s_add_u32 s31, s31, {RING}")
e("s_lshl_b32 s32, s30, 7")
e("v_lshrrev_b32 v3, 5, v2")
e("v_lshlrev_b32 v42, 10, v3")
e("v_and_b32 v3, 15, v2")
e("v_lshrrev_b32 v3, 2, v3")
e("v_lshl_add_u32 v42, v3, 6, v42")
e("v_lshrrev_b32 v3, 4, v2")
e("v_and_b32 v3, 1, v3")
e("v_lshl_add_u32 v42, v3, 5, v42")
e("v_and_b32 v3, 3, v2")
e("v_lshl_add_u32 v42, v3, 3, v42")
e("v_add_u32 v42, s31, v42")
e("v_and_b32 v3, 31, v2")
e(f"v_mul_u32_u24 v43, {XSTR}, v3")
e("v_lshrrev_b32 v3, 5, v2")
e("v_lshl_add_u32 v43, v3, 4, v43")
vm = []
for i in range(5): vm.append('x')
def dma(u):
    slot = u % NST
    if u < 48:
        for d in range(4):
            so = (16*u + 8*(d&1))*1024 + (512 if d>=2 else 0)
            e(f"s_add_u32 s33, s32, {so}")
            e(f"s_add_u32 m0, s31, {slot*4096 + d*1024}")
            e("s_nop 0")
            e("buffer_load_dwordx4 v40, s[16:19], s33 offen lds")
            vm.append(u)
    else:
        for d in range(2):
            so = (16*(u-48) + 8*d)*512
            e(f"s_add_u32 s33, s32, {so}")
            e(f"s_add_u32 m0, s31, {slot*4096 + d*1024}")
            e("s_nop 0")
            e("buffer_load_dwordx4 v41, s[20:23], s33 offen lds")
            vm.append(u)
def waitfor(tag):
    idx = max(i for i,t in enumerate(vm) if t == tag)
    n = len(vm) - 1 - idx
    e(f"s_waitcnt vmcnt({n})")
for u in range(NST-1): dma(u)
waitfor('x')
for i in range(5):
    e(f"v_add_u32 v3, {256*i}, v0")
    e("v_lshrrev_b32 v4, 5, v3")
    e("v_and_b32 v5, 31, v3")
    e("v_add_u32 v6, s28, v4")
    e("v_cmp_gt_u32 vcc, 4, v6")
    for r in range(4):
        e(f"v_cndmask_b32 v{8+4*i+r}, v{8+4*i+r}, 0, vcc")
    e(f"v_mul_u32_u24 v6, {XSTR}, v4")
    e("v_lshl_add_u32 v6, v5, 4, v6")
    if i == 4:
        e("v_cmp_gt_u32 vcc, 128, v0")
        e("s_and_saveexec_b64 s[34:35], vcc")
    e(f"ds_write_b128 v6, v[{8+4*i}:{11+4*i}] offset:{XT}")
    if i == 4:
        e("s_mov_b64 exec, s[34:35]")
e("s_waitcnt lgkmcnt(0)")
e("s_barrier")
for r in range(64,128): e(f"v_mov_b32 v{r}, 0")
FR = [128, 148]
def reads1(u):
    slot = u % NST; b = FR[u&1]; tap = (16*u)//256; kk = (16*u) % 256
    for t in range(4):
        off = slot*4096 + (2048 if t>=2 else 0) + (t&1)*512
        e(f"ds_read_b64_tr_b16 v[{b+4*t}:{b+4*t+1}], v42 offset:{off}")
        e(f"ds_read_b64_tr_b16 v[{b+4*t+2}:{b+4*t+3}], v42 offset:{off+256}")
    e(f"ds_read_b128 v[{b+16}:{b+19}], v43 offset:{XT + (4-2*tap)*XSTR + kk*2}")
def mfma1(u):
    b = FR[u&1]
    for t in range(4):
        e(f"v_mfma_f32_32x32x16_bf16 v[{64+16*t}:{79+16*t}], v[{b+4*t}:{b+4*t+3}], v[{b+16}:{b+19}], v[{64+16*t}:{79+16*t}]")
for u in range(48):
    waitfor(u)
    reads1(u)
    if u > 0: mfma1(u-1)
    e("s_waitcnt lgkmcnt(0)")
    if u + NST - 1 < 64: dma(u+NST-1)
mfma1(47)
e("s_nop 7"); e("s_nop 7")
e("v_mov_b32 v3, 0x4038aa3b")
e("v_mov_b32 v4, 0xbfb8aa3b")
e("v_lshrrev_b32 v5, 5, v2")
e("v_and_b32 v6, 31, v2")
e(f"v_mul_u32_u24 v6, {XSTR}, v6")
e("v_lshl_add_u32 v6, v5, 3, v6")
e("v_add_u32 v6, s32, v6")
for a in range(2):
    for r in range(16):
        F = 64+16*a+r; G = 96+16*a+r
        e(f"v_mul_f32 v8, v3, v{F}")
        e(f"v_mul_f32 v9, v4, v{G}")
        e("v_exp_f32 v8, v8")
        e("v_exp_f32 v9, v9")
        e("s_nop 0")
        e("v_add_f32 v8, 1.0, v8")
        e("v_add_f32 v9, 1.0, v9")
        e("v_rcp_f32 v8, v8")
        e("v_rcp_f32 v9, v9")
        e("s_nop 0")
        e("v_fma_f32 v8, v8, -2.0, 1.0")
        e(f"v_mul_f32 v{F}, v8, v9")
    for q in range(4):
        b = 64+16*a+4*q
        e(f"v_cvt_pk_bf16_f32 v8, v{b}, v{b+1}")
        e(f"v_cvt_pk_bf16_f32 v9, v{b+2}, v{b+3}")
        e(f"ds_write_b64 v6, v[8:9] offset:{ZT + (32*a+8*q)*2}")
        e("s_nop 1")
e("s_waitcnt lgkmcnt(0)")
e("s_barrier")
for r in range(64,96): e(f"v_mov_b32 v{r}, 0")
e(f"v_add_u32 v43, {ZT}, v43")
def reads2(u):
    slot = u % NST; b = FR[u&1]; s2_ = u-48
    for t in range(2):
        off = slot*4096 + t*512
        e(f"ds_read_b64_tr_b16 v[{b+4*t}:{b+4*t+1}], v42 offset:{off}")
        e(f"ds_read_b64_tr_b16 v[{b+4*t+2}:{b+4*t+3}], v42 offset:{off+256}")
    e(f"ds_read_b128 v[{b+16}:{b+19}], v43 offset:{s2_*32}")
def mfma2(u):
    b = FR[u&1]
    for t in range(2):
        e(f"v_mfma_f32_32x32x16_bf16 v[{64+16*t}:{79+16*t}], v[{b+4*t}:{b+4*t+3}], v[{b+16}:{b+19}], v[{64+16*t}:{79+16*t}]")
for u in range(48,64):
    waitfor(u)
    reads2(u)
    if u > 48: mfma2(u-1)
    e("s_waitcnt lgkmcnt(0)")
    if u + NST - 1 < 64: dma(u+NST-1)
mfma2(63)
e("s_nop 7"); e("s_nop 7")
e("v_and_b32 v6, 31, v2")
e("v_add_u32 v6, s29, v6")
e("v_lshlrev_b32 v6, 9, v6")
e("v_lshrrev_b32 v5, 5, v2")
e("v_lshl_add_u32 v6, v5, 3, v6")
e("v_add_u32 v6, s32, v6")
for a in range(2):
    for q in range(4):
        b = 64+16*a+4*q
        e(f"v_cvt_pk_bf16_f32 v{8+2*(4*a+q)}, v{b}, v{b+1}")
        e(f"v_cvt_pk_bf16_f32 v{9+2*(4*a+q)}, v{b+2}, v{b+3}")
        e(f"buffer_store_dwordx2 v[{8+2*(4*a+q)}:{9+2*(4*a+q)}], v6, s[24:27], 0 offen offset:{(32*a+8*q)*2}")
lab("L_done")
e("s_endpgm")
o.append('.section .rodata,"a"')
o.append('.p2align 6')
o.append(f'.amdhsa_kernel {K}')
o.append('  .amdhsa_next_free_vgpr 168')
o.append('  .amdhsa_next_free_sgpr 40')
o.append('  .amdhsa_accum_offset 168')
o.append('  .amdhsa_group_segment_fixed_size 0')
o.append('  .amdhsa_kernarg_size 48')
o.append('  .amdhsa_user_sgpr_count 2')
o.append('  .amdhsa_user_sgpr_kernarg_segment_ptr 1')
o.append('  .amdhsa_system_sgpr_workgroup_id_x 1')
o.append('.end_amdhsa_kernel')
open(sys.argv[2],"w").write('\n'.join(x for x in o if x is not None)+'\n')
```

```python
NST = 4
XT = 0; XSTR = 528
ZT = 19008
RING = 36864
LDS_TOTAL = RING + 4*NST*4096
o = []
def e(s): o.append("    " + s)
def lab(s): o.append(s + ":")

hdr = open('standalone__autoregressive_conv_wavenet__speech.s.ref').read().split('\n')
top = [l for l in hdr if l.startswith(';') and '@launch' not in l]
o += top
o.append(f"; @launch grid=(250,1,1) block=(256,1,1) lds={LDS_TOTAL}")
o.append('.amdgcn_target "amdgcn-amd-amdhsa--gfx950"')
o.append('.text')
K = 'standalone__autoregressive_conv_wavenet__speech_kernel'
o.append(f'.globl {K}')
o.append('.p2align 8')
o.append(f'.type {K},@function')
lab(K)
e("s_cmp_ge_u32 s2, 250")
e("s_cbranch_scc1 L_done")
e("s_load_dwordx4 s[4:7], s[0:1], 0")
e("s_load_dwordx4 s[8:11], s[0:1], 16")
e("s_cmp_ge_u32 s2, 125")
e("s_cselect_b32 s3, 125, 0")
e("s_sub_u32 s28, s2, s3")
e("s_lshl_b32 s28, s28, 5")
e("s_lshl_b32 s29, s2, 5")
e("v_lshrrev_b32 v1, 6, v0")
e("s_nop 0")
e("v_readfirstlane_b32 s30, v1")
e("v_and_b32 v2, 63, v0")
e("s_waitcnt lgkmcnt(0)")
for i,(base,nb) in enumerate([(4,4096000),(6,786432),(8,131072),(10,4096000)]):
    r = 12+4*i
    e(f"s_mov_b32 s{r}, s{base}")
    e(f"s_and_b32 s{r+1}, s{base+1}, 0xffff")
    e(f"s_mov_b32 s{r+2}, {nb}")
    e(f"s_mov_b32 s{r+3}, 0x00020000")
for i in range(5):
    e(f"v_add_u32 v3, {256*i}, v0")
    e("v_lshrrev_b32 v4, 5, v3")
    e("v_and_b32 v5, 31, v3")
    e("v_add_u32 v6, s28, v4")
    e("v_cmp_gt_u32 vcc, 4, v6")
    e("v_add_u32 v6, s29, v4")
    e("v_subrev_u32 v6, 4, v6")
    e("v_cndmask_b32 v6, v6, 0, vcc")
    e("v_lshlrev_b32 v6, 9, v6")
    e("v_lshl_add_u32 v6, v5, 4, v6")
    e(f"buffer_load_dwordx4 v[{8+4*i}:{11+4*i}], v6, s[12:15], 0 offen")
e("v_lshrrev_b32 v3, 2, v2")
e("v_and_b32 v3, 7, v3")
e("v_and_b32 v4, 3, v2")
e("v_lshrrev_b32 v5, 5, v2")
e("v_lshl_add_u32 v4, v5, 2, v4")
e("v_lshlrev_b32 v4, 4, v4")
e("v_lshl_add_u32 v40, v3, 10, v4")
e("v_lshl_add_u32 v41, v3, 9, v4")
e("s_mul_i32 s31, s30, " + str(NST*4096))
e(f"s_add_u32 s31, s31, {RING}")
e("s_lshl_b32 s32, s30, 7")
e("v_lshrrev_b32 v3, 5, v2")
e("v_lshlrev_b32 v42, 10, v3")
e("v_and_b32 v3, 15, v2")
e("v_lshrrev_b32 v3, 2, v3")
e("v_lshl_add_u32 v42, v3, 6, v42")
e("v_lshrrev_b32 v3, 4, v2")
e("v_and_b32 v3, 1, v3")
e("v_lshl_add_u32 v42, v3, 5, v42")
e("v_and_b32 v3, 3, v2")
e("v_lshl_add_u32 v42, v3, 3, v42")
e("v_add_u32 v42, s31, v42")
e("v_and_b32 v3, 31, v2")
e(f"v_mul_u32_u24 v43, {XSTR}, v3")
e("v_lshrrev_b32 v3, 5, v2")
e("v_lshl_add_u32 v43, v3, 4, v43")
vm = []
for i in range(5): vm.append('x')
def dma(u):
    slot = u % NST
    if u < 48:
        for d in range(4):
            so = (16*u + 8*(d&1))*1024 + (512 if d>=2 else 0)
            e(f"s_add_u32 s33, s32, {so}")
            e(f"s_add_u32 m0, s31, {slot*4096 + d*1024}")
            e("s_nop 0")
            e("buffer_load_dwordx4 v40, s[16:19], s33 offen lds")
            vm.append(u)
    else:
        for d in range(2):
            so = (16*(u-48) + 8*d)*512
            e(f"s_add_u32 s33, s32, {so}")
            e(f"s_add_u32 m0, s31, {slot*4096 + d*1024}")
            e("s_nop 0")
            e("buffer_load_dwordx4 v41, s[20:23], s33 offen lds")
            vm.append(u)
def waitfor(tag):
    idx = max(i for i,t in enumerate(vm) if t == tag)
    n = len(vm) - 1 - idx
    e(f"s_waitcnt vmcnt({n})")
for u in range(NST-1): dma(u)
waitfor('x')
for i in range(5):
    e(f"v_add_u32 v3, {256*i}, v0")
    e("v_lshrrev_b32 v4, 5, v3")
    e("v_and_b32 v5, 31, v3")
    e("v_add_u32 v6, s28, v4")
    e("v_cmp_gt_u32 vcc, 4, v6")
    for r in range(4):
        e(f"v_cndmask_b32 v{8+4*i+r}, v{8+4*i+r}, 0, vcc")
    e(f"v_mul_u32_u24 v6, {XSTR}, v4")
    e("v_lshl_add_u32 v6, v5, 4, v6")
    if i == 4:
        e("v_cmp_gt_u32 vcc, 128, v0")
        e("s_and_saveexec_b64 s[34:35], vcc")
    e(f"ds_write_b128 v6, v[{8+4*i}:{11+4*i}] offset:{XT}")
    if i == 4:
        e("s_mov_b64 exec, s[34:35]")
e("s_waitcnt lgkmcnt(0)")
e("s_barrier")
for r in range(64,128): e(f"v_mov_b32 v{r}, 0")
FR = [128, 148]
def reads1(u):
    slot = u % NST; b = FR[u&1]; tap = (16*u)//256; kk = (16*u) % 256
    for t in range(4):
        off = slot*4096 + (2048 if t>=2 else 0) + (t&1)*512
        e(f"ds_read_b64_tr_b16 v[{b+4*t}:{b+4*t+1}], v42 offset:{off}")
        e(f"ds_read_b64_tr_b16 v[{b+4*t+2}:{b+4*t+3}], v42 offset:{off+256}")
    e(f"ds_read_b128 v[{b+16}:{b+19}], v43 offset:{XT + (4-2*tap)*XSTR + kk*2}")
def mfma1(u):
    b = FR[u&1]
    for t in range(4):
        e(f"v_mfma_f32_32x32x16_bf16 v[{64+16*t}:{79+16*t}], v[{b+4*t}:{b+4*t+3}], v[{b+16}:{b+19}], v[{64+16*t}:{79+16*t}]")

assert NST == 4
def dma_loop(c):
    slot = (c+3) % 4
    for d in range(4):
        so = (16*(c+3) + 8*(d&1))*1024 + (512 if d>=2 else 0)
        e(f"s_add_u32 s33, s36, {so}")
        e(f"s_add_u32 m0, s31, {slot*4096 + d*1024}")
        e("s_nop 0")
        e("buffer_load_dwordx4 v40, s[16:19], s33 offen lds")
def reads1l(c):
    b = FR[c&1]
    for t in range(4):
        off = c*4096 + (2048 if t>=2 else 0) + (t&1)*512
        e(f"ds_read_b64_tr_b16 v[{b+4*t}:{b+4*t+1}], v42 offset:{off}")
        e(f"ds_read_b64_tr_b16 v[{b+4*t+2}:{b+4*t+3}], v42 offset:{off+256}")
    e(f"ds_read_b128 v[{b+16}:{b+19}], v44 offset:{c*32}")
e(f"v_add_u32 v44, {XT + 4*XSTR}, v43")
e("s_mov_b32 s36, s32")
e("s_mov_b32 s37, 0")
e("s_waitcnt vmcnt(8)")
reads1l(0)
e("s_waitcnt lgkmcnt(0)")
dma_loop(0)
lab("L_loop")
for c in range(1,5):
    cc = c % 4
    e("s_waitcnt vmcnt(8)")
    if c == 4:
        e("v_add_u32 v44, 128, v44")
        e("s_and_b32 s38, s37, 3")
        e("s_cmp_eq_u32 s38, 3")
        e(f"s_cselect_b32 s38, {512+2*XSTR}, 0")
        e("v_subrev_u32 v44, s38, v44")
        e("s_add_u32 s36, s36, 65536")
    reads1l(cc)
    b = FR[(c-1)&1]
    for t in range(4):
        e(f"v_mfma_f32_32x32x16_bf16 v[{64+16*t}:{79+16*t}], v[{b+4*t}:{b+4*t+3}], v[{b+16}:{b+19}], v[{64+16*t}:{79+16*t}]")
    e("s_waitcnt lgkmcnt(0)")
    dma_loop(cc)
e("s_add_u32 s37, s37, 1")
e("s_cmp_lt_u32 s37, 11")
e("s_cbranch_scc1 L_loop")
vm.clear(); vm += [45]*4+[46]*4+[47]*4
for u in range(45,48):
    waitfor(u)
    reads1l(u%4)
    mfma1(u-1)
    e("s_waitcnt lgkmcnt(0)")
    dma(u+3)
mfma1(47)
e("s_nop 7"); e("s_nop 7")
e("v_mov_b32 v3, 0x4038aa3b")
e("v_mov_b32 v4, 0xbfb8aa3b")
e("v_lshrrev_b32 v5, 5, v2")
e("v_and_b32 v6, 31, v2")
e(f"v_mul_u32_u24 v6, {XSTR}, v6")
e("v_lshl_add_u32 v6, v5, 3, v6")
e("v_add_u32 v6, s32, v6")
for a in range(2):
    for r in range(16):
        F = 64+16*a+r; G = 96+16*a+r
        e(f"v_mul_f32 v8, v3, v{F}")
        e(f"v_mul_f32 v9, v4, v{G}")
        e("v_exp_f32 v8, v8")
        e("v_exp_f32 v9, v9")
        e("s_nop 0")
        e("v_add_f32 v8, 1.0, v8")
        e("v_add_f32 v9, 1.0, v9")
        e("v_rcp_f32 v8, v8")
        e("v_rcp_f32 v9, v9")
        e("s_nop 0")
        e("v_fma_f32 v8, v8, -2.0, 1.0")
        e(f"v_mul_f32 v{F}, v8, v9")
    for q in range(4):
        b = 64+16*a+4*q
        e(f"v_cvt_pk_bf16_f32 v8, v{b}, v{b+1}")
        e(f"v_cvt_pk_bf16_f32 v9, v{b+2}, v{b+3}")
        e(f"ds_write_b64 v6, v[8:9] offset:{ZT + (32*a+8*q)*2}")
        e("s_nop 1")
e("s_waitcnt lgkmcnt(0)")
e("s_barrier")
for r in range(64,96): e(f"v_mov_b32 v{r}, 0")
e(f"v_add_u32 v43, {ZT}, v43")
def reads2(u):
    slot = u % NST; b = FR[u&1]; s2_ = u-48
    for t in range(2):
        off = slot*4096 + t*512
        e(f"ds_read_b64_tr_b16 v[{b+4*t}:{b+4*t+1}], v42 offset:{off}")
        e(f"ds_read_b64_tr_b16 v[{b+4*t+2}:{b+4*t+3}], v42 offset:{off+256}")
    e(f"ds_read_b128 v[{b+16}:{b+19}], v43 offset:{s2_*32}")
def mfma2(u):
    b = FR[u&1]
    for t in range(2):
        e(f"v_mfma_f32_32x32x16_bf16 v[{64+16*t}:{79+16*t}], v[{b+4*t}:{b+4*t+3}], v[{b+16}:{b+19}], v[{64+16*t}:{79+16*t}]")
for u in range(48,64):
    waitfor(u)
    reads2(u)
    if u > 48: mfma2(u-1)
    e("s_waitcnt lgkmcnt(0)")
    if u + NST - 1 < 64: dma(u+NST-1)
mfma2(63)
e("s_nop 7"); e("s_nop 7")
e("v_and_b32 v6, 31, v2")
e("v_add_u32 v6, s29, v6")
e("v_lshlrev_b32 v6, 9, v6")
e("v_lshrrev_b32 v5, 5, v2")
e("v_lshl_add_u32 v6, v5, 3, v6")
e("v_add_u32 v6, s32, v6")
for a in range(2):
    for q in range(4):
        b = 64+16*a+4*q
        e(f"v_cvt_pk_bf16_f32 v{8+2*(4*a+q)}, v{b}, v{b+1}")
        e(f"v_cvt_pk_bf16_f32 v{9+2*(4*a+q)}, v{b+2}, v{b+3}")
        e(f"buffer_store_dwordx2 v[{8+2*(4*a+q)}:{9+2*(4*a+q)}], v6, s[24:27], 0 offen offset:{(32*a+8*q)*2}")
lab("L_done")
e("s_endpgm")
o.append('.section .rodata,"a"')
o.append('.p2align 6')
o.append(f'.amdhsa_kernel {K}')
o.append('  .amdhsa_next_free_vgpr 168')
o.append('  .amdhsa_next_free_sgpr 40')
o.append('  .amdhsa_accum_offset 168')
o.append('  .amdhsa_group_segment_fixed_size 0')
o.append('  .amdhsa_kernarg_size 48')
o.append('  .amdhsa_user_sgpr_count 2')
o.append('  .amdhsa_user_sgpr_kernarg_segment_ptr 1')
o.append('  .amdhsa_system_sgpr_workgroup_id_x 1')
o.append('.end_amdhsa_kernel')
open('standalone__autoregressive_conv_wavenet__speech.s','w').write('\n'.join(x for x in o if x is not None)+'\n')
```

```python
NST = 4
XT = 0; XSTR = 528
ZT = 19008
RING = 36864
LDS_TOTAL = RING + 4*NST*4096
o = []
def e(s): o.append("    " + s)
def lab(s): o.append(s + ":")

hdr = open('standalone__autoregressive_conv_wavenet__speech.s.ref').read().split('\n')
top = [l for l in hdr if l.startswith(';') and '@launch' not in l]
o += top
o.append(f"; @launch grid=(250,1,1) block=(256,1,1) lds={LDS_TOTAL}")
o.append('.amdgcn_target "amdgcn-amd-amdhsa--gfx950"')
o.append('.text')
K = 'standalone__autoregressive_conv_wavenet__speech_kernel'
o.append(f'.globl {K}')
o.append('.p2align 8')
o.append(f'.type {K},@function')
lab(K)
e("s_cmp_ge_u32 s2, 250")
e("s_cbranch_scc1 L_done")
e("s_load_dwordx4 s[4:7], s[0:1], 0")
e("s_load_dwordx4 s[8:11], s[0:1], 16")
e("s_cmp_ge_u32 s2, 125")
e("s_cselect_b32 s3, 125, 0")
e("s_sub_u32 s28, s2, s3")
e("s_lshl_b32 s28, s28, 5")
e("s_lshl_b32 s29, s2, 5")
e("v_lshrrev_b32 v1, 6, v0")
e("s_nop 0")
e("v_readfirstlane_b32 s30, v1")
e("v_and_b32 v2, 63, v0")
e("s_waitcnt lgkmcnt(0)")
for i,(base,nb) in enumerate([(4,4096000),(6,786432),(8,131072),(10,4096000)]):
    r = 12+4*i
    e(f"s_mov_b32 s{r}, s{base}")
    e(f"s_and_b32 s{r+1}, s{base+1}, 0xffff")
    e(f"s_mov_b32 s{r+2}, {nb}")
    e(f"s_mov_b32 s{r+3}, 0x00020000")
for i in range(5):
    e(f"v_add_u32 v3, {256*i}, v0")
    e("v_lshrrev_b32 v4, 5, v3")
    e("v_and_b32 v5, 31, v3")
    e("v_add_u32 v6, s28, v4")
    e("v_cmp_gt_u32 vcc, 4, v6")
    e("v_add_u32 v6, s29, v4")
    e("v_subrev_u32 v6, 4, v6")
    e("v_cndmask_b32 v6, v6, 0, vcc")
    e("v_lshlrev_b32 v6, 9, v6")
    e("v_lshl_add_u32 v6, v5, 4, v6")
    e(f"buffer_load_dwordx4 v[{8+4*i}:{11+4*i}], v6, s[12:15], 0 offen")
e("v_lshrrev_b32 v3, 2, v2")
e("v_and_b32 v3, 7, v3")
e("v_and_b32 v4, 3, v2")
e("v_lshrrev_b32 v5, 5, v2")
e("v_lshl_add_u32 v4, v5, 2, v4")
e("v_lshlrev_b32 v4, 4, v4")
e("v_lshl_add_u32 v40, v3, 10, v4")
e("v_lshl_add_u32 v41, v3, 9, v4")
e("s_mul_i32 s31, s30, " + str(NST*4096))
e(f"s_add_u32 s31, s31, {RING}")
e("s_lshl_b32 s32, s30, 7")
e("s_mul_hi_u32 s40, s2, 357913942")
e("s_mul_i32 s40, s40, 12")
e("s_sub_u32 s40, s2, s40")
e("s_lshl_b32 s40, s40, 6")
e("s_lshl_b32 s36, s40, 10")
e("s_add_u32 s36, s36, s32")
e("s_add_u32 s41, s40, 64")
e("s_cmp_eq_u32 s41, 768")
e("s_cselect_b32 s41, 0, s41")
e("s_lshl_b32 s39, s41, 10")
e("s_add_u32 s39, s39, s32")
e("v_lshrrev_b32 v3, 5, v2")
e("v_lshlrev_b32 v42, 10, v3")
e("v_and_b32 v3, 15, v2")
e("v_lshrrev_b32 v3, 2, v3")
e("v_lshl_add_u32 v42, v3, 6, v42")
e("v_lshrrev_b32 v3, 4, v2")
e("v_and_b32 v3, 1, v3")
e("v_lshl_add_u32 v42, v3, 5, v42")
e("v_and_b32 v3, 3, v2")
e("v_lshl_add_u32 v42, v3, 3, v42")
e("v_add_u32 v42, s31, v42")
e("v_and_b32 v3, 31, v2")
e(f"v_mul_u32_u24 v43, {XSTR}, v3")
e("v_lshrrev_b32 v3, 5, v2")
e("v_lshl_add_u32 v43, v3, 4, v43")
vm = []
for i in range(5): vm.append('x')
def dma(u):
    slot = u % NST
    if u < 48:
        for d in range(4):
            so = (16*(u%4) + 8*(d&1))*1024 + (512 if d>=2 else 0)
            e(f"s_add_u32 s33, s36, {so}")
            e(f"s_add_u32 m0, s31, {slot*4096 + d*1024}")
            e("s_nop 0")
            e("buffer_load_dwordx4 v40, s[16:19], s33 offen lds")
            vm.append(u)
    else:
        for d in range(2):
            so = (16*(u-48) + 8*d)*512
            e(f"s_add_u32 s33, s32, {so}")
            e(f"s_add_u32 m0, s31, {slot*4096 + d*1024}")
            e("s_nop 0")
            e("buffer_load_dwordx4 v41, s[20:23], s33 offen lds")
            vm.append(u)
def waitfor(tag):
    idx = max(i for i,t in enumerate(vm) if t == tag)
    n = len(vm) - 1 - idx
    e(f"s_waitcnt vmcnt({n})")
for u in range(NST-1): dma(u)
waitfor('x')
for i in range(5):
    e(f"v_add_u32 v3, {256*i}, v0")
    e("v_lshrrev_b32 v4, 5, v3")
    e("v_and_b32 v5, 31, v3")
    e("v_add_u32 v6, s28, v4")
    e("v_cmp_gt_u32 vcc, 4, v6")
    for r in range(4):
        e(f"v_cndmask_b32 v{8+4*i+r}, v{8+4*i+r}, 0, vcc")
    e(f"v_mul_u32_u24 v6, {XSTR}, v4")
    e("v_lshl_add_u32 v6, v5, 4, v6")
    if i == 4:
        e("v_cmp_gt_u32 vcc, 128, v0")
        e("s_and_saveexec_b64 s[34:35], vcc")
    e(f"ds_write_b128 v6, v[{8+4*i}:{11+4*i}] offset:{XT}")
    if i == 4:
        e("s_mov_b64 exec, s[34:35]")
e("s_waitcnt lgkmcnt(0)")
e("s_barrier")
for r in range(64,128): e(f"v_mov_b32 v{r}, 0")
FR = [128, 148]
def reads1(u):
    slot = u % NST; b = FR[u&1]; tap = (16*u)//256; kk = (16*u) % 256
    for t in range(4):
        off = slot*4096 + (2048 if t>=2 else 0) + (t&1)*512
        e(f"ds_read_b64_tr_b16 v[{b+4*t}:{b+4*t+1}], v42 offset:{off}")
        e(f"ds_read_b64_tr_b16 v[{b+4*t+2}:{b+4*t+3}], v42 offset:{off+256}")
    e(f"ds_read_b128 v[{b+16}:{b+19}], v43 offset:{XT + (4-2*tap)*XSTR + kk*2}")
def mfma1(u):
    b = FR[u&1]
    for t in range(4):
        e(f"v_mfma_f32_32x32x16_bf16 v[{64+16*t}:{79+16*t}], v[{b+4*t}:{b+4*t+3}], v[{b+16}:{b+19}], v[{64+16*t}:{79+16*t}]")

assert NST == 4
def dma_loop(c):
    slot = (c+3) % 4
    breg, st = ("s39", c-1) if c >= 1 else ("s36", 3)
    for d in range(4):
        so = (16*st + 8*(d&1))*1024 + (512 if d>=2 else 0)
        e(f"s_add_u32 s33, {breg}, {so}")
        e(f"s_add_u32 m0, s31, {slot*4096 + d*1024}")
        e("s_nop 0")
        e("buffer_load_dwordx4 v40, s[16:19], s33 offen lds")
def reads1l(c):
    b = FR[c&1]
    for t in range(4):
        off = c*4096 + (2048 if t>=2 else 0) + (t&1)*512
        e(f"ds_read_b64_tr_b16 v[{b+4*t}:{b+4*t+1}], v42 offset:{off}")
        e(f"ds_read_b64_tr_b16 v[{b+4*t+2}:{b+4*t+3}], v42 offset:{off+256}")
    e(f"ds_read_b128 v[{b+16}:{b+19}], v44 offset:{c*32}")
e("s_lshr_b32 s42, s40, 8")
e(f"s_mul_i32 s42, s42, {2*XSTR}")
e("s_and_b32 s43, s40, 255")
e("s_lshl_b32 s43, s43, 1")
e("s_sub_u32 s43, s43, s42")
e(f"s_add_u32 s43, s43, {XT+4*XSTR}")
e("v_add_u32 v44, s43, v43")
e("s_mov_b32 s37, 0")
e("s_waitcnt vmcnt(8)")
reads1l(0)
e("s_waitcnt lgkmcnt(0)")
dma_loop(0)
lab("L_loop")
for c in range(1,5):
    cc = c % 4
    e("s_waitcnt vmcnt(8)")
    if c == 4:
        e("s_mov_b32 s40, s41")
        e("s_mov_b32 s36, s39")
        e("s_add_u32 s41, s40, 64")
        e("s_cmp_eq_u32 s41, 768")
        e("s_cselect_b32 s41, 0, s41")
        e("s_lshl_b32 s39, s41, 10")
        e("s_add_u32 s39, s39, s32")
        e("s_lshr_b32 s42, s40, 8")
        e(f"s_mul_i32 s42, s42, {2*XSTR}")
        e("s_and_b32 s43, s40, 255")
        e("s_lshl_b32 s43, s43, 1")
        e("s_sub_u32 s43, s43, s42")
        e(f"s_add_u32 s43, s43, {XT+4*XSTR}")
        e("v_add_u32 v44, s43, v43")
    reads1l(cc)
    b = FR[(c-1)&1]
    for t in range(4):
        e(f"v_mfma_f32_32x32x16_bf16 v[{64+16*t}:{79+16*t}], v[{b+4*t}:{b+4*t+3}], v[{b+16}:{b+19}], v[{64+16*t}:{79+16*t}]")
    e("s_waitcnt lgkmcnt(0)")
    dma_loop(cc)
e("s_add_u32 s37, s37, 1")
e("s_cmp_lt_u32 s37, 11")
e("s_cbranch_scc1 L_loop")
vm.clear(); vm += [45]*4+[46]*4+[47]*4
for u in range(45,48):
    waitfor(u)
    reads1l(u%4)
    mfma1(u-1)
    e("s_waitcnt lgkmcnt(0)")
    dma(u+3)
mfma1(47)
e("s_nop 7"); e("s_nop 7")
e("v_mov_b32 v3, 0x4038aa3b")
e("v_mov_b32 v4, 0xbfb8aa3b")
e("v_lshrrev_b32 v5, 5, v2")
e("v_and_b32 v6, 31, v2")
e(f"v_mul_u32_u24 v6, {XSTR}, v6")
e("v_lshl_add_u32 v6, v5, 3, v6")
e("v_add_u32 v6, s32, v6")
for a in range(2):
    for r in range(16):
        F = 64+16*a+r; G = 96+16*a+r
        e(f"v_mul_f32 v8, v3, v{F}")
        e(f"v_mul_f32 v9, v4, v{G}")
        e("v_exp_f32 v8, v8")
        e("v_exp_f32 v9, v9")
        e("s_nop 0")
        e("v_add_f32 v8, 1.0, v8")
        e("v_add_f32 v9, 1.0, v9")
        e("v_rcp_f32 v8, v8")
        e("v_rcp_f32 v9, v9")
        e("s_nop 0")
        e("v_fma_f32 v8, v8, -2.0, 1.0")
        e(f"v_mul_f32 v{F}, v8, v9")
    for q in range(4):
        b = 64+16*a+4*q
        e(f"v_cvt_pk_bf16_f32 v8, v{b}, v{b+1}")
        e(f"v_cvt_pk_bf16_f32 v9, v{b+2}, v{b+3}")
        e(f"ds_write_b64 v6, v[8:9] offset:{ZT + (32*a+8*q)*2}")
        e("s_nop 1")
e("s_waitcnt lgkmcnt(0)")
e("s_barrier")
for r in range(64,96): e(f"v_mov_b32 v{r}, 0")
e(f"v_add_u32 v43, {ZT}, v43")
def reads2(u):
    slot = u % NST; b = FR[u&1]; s2_ = u-48
    for t in range(2):
        off = slot*4096 + t*512
        e(f"ds_read_b64_tr_b16 v[{b+4*t}:{b+4*t+1}], v42 offset:{off}")
        e(f"ds_read_b64_tr_b16 v[{b+4*t+2}:{b+4*t+3}], v42 offset:{off+256}")
    e(f"ds_read_b128 v[{b+16}:{b+19}], v43 offset:{s2_*32}")
def mfma2(u):
    b = FR[u&1]
    for t in range(2):
        e(f"v_mfma_f32_32x32x16_bf16 v[{64+16*t}:{79+16*t}], v[{b+4*t}:{b+4*t+3}], v[{b+16}:{b+19}], v[{64+16*t}:{79+16*t}]")
for u in range(48,64):
    waitfor(u)
    reads2(u)
    if u > 48: mfma2(u-1)
    e("s_waitcnt lgkmcnt(0)")
    if u + NST - 1 < 64: dma(u+NST-1)
mfma2(63)
e("s_nop 7"); e("s_nop 7")
e("v_and_b32 v6, 31, v2")
e("v_add_u32 v6, s29, v6")
e("v_lshlrev_b32 v6, 9, v6")
e("v_lshrrev_b32 v5, 5, v2")
e("v_lshl_add_u32 v6, v5, 3, v6")
e("v_add_u32 v6, s32, v6")
for a in range(2):
    for q in range(4):
        b = 64+16*a+4*q
        e(f"v_cvt_pk_bf16_f32 v{8+2*(4*a+q)}, v{b}, v{b+1}")
        e(f"v_cvt_pk_bf16_f32 v{9+2*(4*a+q)}, v{b+2}, v{b+3}")
        e(f"buffer_store_dwordx2 v[{8+2*(4*a+q)}:{9+2*(4*a+q)}], v6, s[24:27], 0 offen offset:{(32*a+8*q)*2}")
lab("L_done")
e("s_endpgm")
o.append('.section .rodata,"a"')
o.append('.p2align 6')
o.append(f'.amdhsa_kernel {K}')
o.append('  .amdhsa_next_free_vgpr 168')
o.append('  .amdhsa_next_free_sgpr 48')
o.append('  .amdhsa_accum_offset 168')
o.append('  .amdhsa_group_segment_fixed_size 0')
o.append('  .amdhsa_kernarg_size 48')
o.append('  .amdhsa_user_sgpr_count 2')
o.append('  .amdhsa_user_sgpr_kernarg_segment_ptr 1')
o.append('  .amdhsa_system_sgpr_workgroup_id_x 1')
o.append('.end_amdhsa_kernel')
open('standalone__autoregressive_conv_wavenet__speech.s','w').write('\n'.join(x for x in o if x is not None)+'\n')
```

```python
XT = 0; XSTR = 528
ZT = 19008
RING = 36864
WR = 8192
LDS_TOTAL = RING + 8*WR
o = []
def e(s): o.append("    " + s)
def lab(s): o.append(s + ":")
hdr = open('standalone__autoregressive_conv_wavenet__speech.s.ref').read().split('\n')
o += [l for l in hdr if l.startswith(';') and '@launch' not in l]
o.append(f"; @launch grid=(250,1,1) block=(512,1,1) lds={LDS_TOTAL}")
o.append('.amdgcn_target "amdgcn-amd-amdhsa--gfx950"'); o.append('.text')
K = 'standalone__autoregressive_conv_wavenet__speech_kernel'
o.append(f'.globl {K}'); o.append('.p2align 8'); o.append(f'.type {K},@function')
lab(K)
e("s_cmp_ge_u32 s2, 250"); e("s_cbranch_scc1 L_done")
e("s_load_dwordx4 s[4:7], s[0:1], 0"); e("s_load_dwordx4 s[8:11], s[0:1], 16")
e("s_cmp_ge_u32 s2, 125"); e("s_cselect_b32 s3, 125, 0"); e("s_sub_u32 s28, s2, s3")
e("s_lshl_b32 s28, s28, 5"); e("s_lshl_b32 s29, s2, 5")
e("v_lshrrev_b32 v1, 6, v0"); e("s_nop 0"); e("v_readfirstlane_b32 s30, v1")
e("v_and_b32 v2, 63, v0")
e("s_waitcnt lgkmcnt(0)")
for i,(base,nb) in enumerate([(4,4096000),(6,786432),(8,131072),(10,4096000)]):
    r = 12+4*i
    e(f"s_mov_b32 s{r}, s{base}"); e(f"s_and_b32 s{r+1}, s{base+1}, 0xffff")
    e(f"s_mov_b32 s{r+2}, {nb}"); e(f"s_mov_b32 s{r+3}, 0x00020000")
vm = []
for i in range(3):
    e(f"v_add_u32 v3, {512*i}, v0"); e("v_lshrrev_b32 v4, 5, v3"); e("v_and_b32 v5, 31, v3")
    e("v_add_u32 v6, s28, v4"); e("v_cmp_gt_u32 vcc, 4, v6")
    e("v_add_u32 v6, s29, v4"); e("v_subrev_u32 v6, 4, v6"); e("v_cndmask_b32 v6, v6, 0, vcc")
    e("v_min_u32 v6, 7999, v6")
    e("v_lshlrev_b32 v6, 9, v6"); e("v_lshl_add_u32 v6, v5, 4, v6")
    e(f"buffer_load_dwordx4 v[{8+4*i}:{11+4*i}], v6, s[12:15], 0 offen"); vm.append('x')
e("v_lshrrev_b32 v3, 2, v2"); e("v_and_b32 v4, 3, v2"); e("v_lshlrev_b32 v4, 4, v4")
e("v_lshl_add_u32 v40, v3, 10, v4"); e("v_lshl_add_u32 v41, v3, 9, v4")
e(f"s_mul_i32 s31, s30, {WR}"); e(f"s_add_u32 s31, s31, {RING}")
e("s_lshl_b32 s32, s30, 6")
e("s_mul_hi_u32 s40, s2, 357913942"); e("s_mul_i32 s40, s40, 12"); e("s_sub_u32 s40, s2, s40")
e("s_lshl_b32 s40, s40, 6")
def nextk():
    e("s_add_u32 s41, s40, 64"); e("s_cmp_eq_u32 s41, 768"); e("s_cselect_b32 s41, 0, s41")
    e("s_lshl_b32 s39, s41, 10"); e("s_add_u32 s39, s39, s32")
    e("s_lshr_b32 s42, s40, 8"); e(f"s_mul_i32 s42, s42, {2*XSTR}"); e("s_and_b32 s43, s40, 255")
    e("s_lshl_b32 s43, s43, 1"); e("s_sub_u32 s43, s43, s42"); e(f"s_add_u32 s43, s43, {XT+4*XSTR}")
    e("v_add_u32 v44, s43, v43")
e("s_lshl_b32 s36, s40, 10"); e("s_add_u32 s36, s36, s32")
e("v_lshrrev_b32 v3, 5, v2"); e("v_lshlrev_b32 v42, 9, v3")
e("v_and_b32 v3, 15, v2"); e("v_lshrrev_b32 v3, 2, v3"); e("v_lshl_add_u32 v42, v3, 6, v42")
e("v_lshrrev_b32 v3, 4, v2"); e("v_and_b32 v3, 1, v3"); e("v_lshl_add_u32 v42, v3, 5, v42")
e("v_and_b32 v3, 3, v2"); e("v_lshl_add_u32 v42, v3, 3, v42"); e("v_add_u32 v42, s31, v42")
e("v_and_b32 v3, 31, v2"); e(f"v_mul_u32_u24 v43, {XSTR}, v3")
e("v_lshrrev_b32 v3, 5, v2"); e("v_lshl_add_u32 v43, v3, 4, v43")
nextk()
def dmaw(breg, st, slot, tag):
    for d in range(2):
        e(f"s_add_u32 s33, {breg}, {16*st*1024 + 512*d}")
        e(f"s_add_u32 m0, s31, {slot*2048 + d*1024}"); e("s_nop 0")
        e("buffer_load_dwordx4 v40, s[16:19], s33 offen lds"); vm.append(tag)
def dmao(u):
    e(f"s_add_u32 s33, s32, {16*u*512}")
    e(f"s_add_u32 m0, s31, {(u%8)*1024}"); e("s_nop 0")
    e("buffer_load_dwordx4 v41, s[20:23], s33 offen lds"); vm.append(('o',u))
def waitfor(tag):
    idx = max(i for i,t in enumerate(vm) if t == tag)
    e(f"s_waitcnt vmcnt({len(vm)-1-idx})")
for u in range(3): dmaw("s36", u, u, u)
waitfor('x')
for i in range(3):
    e(f"v_add_u32 v3, {512*i}, v0"); e("v_lshrrev_b32 v4, 5, v3"); e("v_and_b32 v5, 31, v3")
    e("v_add_u32 v6, s28, v4"); e("v_cmp_gt_u32 vcc, 4, v6")
    for r in range(4): e(f"v_cndmask_b32 v{8+4*i+r}, v{8+4*i+r}, 0, vcc")
    e(f"v_mul_u32_u24 v6, {XSTR}, v4"); e("v_lshl_add_u32 v6, v5, 4, v6")
    if i == 2: e("v_cmp_gt_u32 vcc, 128, v0"); e("s_and_saveexec_b64 s[34:35], vcc")
    e(f"ds_write_b128 v6, v[{8+4*i}:{11+4*i}] offset:{XT}")
    if i == 2: e("s_mov_b64 exec, s[34:35]")
e("s_waitcnt lgkmcnt(0)"); e("s_barrier")
for r in range(64,96): e(f"v_mov_b32 v{r}, 0")
FR = [96, 108]
def reads1(c):
    b = FR[c&1]
    for t in range(2):
        off = c*2048 + t*1024
        e(f"ds_read_b64_tr_b16 v[{b+4*t}:{b+4*t+1}], v42 offset:{off}")
        e(f"ds_read_b64_tr_b16 v[{b+4*t+2}:{b+4*t+3}], v42 offset:{off+256}")
    e(f"ds_read_b128 v[{b+8}:{b+11}], v44 offset:{c*32}")
def mf1(c):
    b = FR[c&1]
    for t in range(2):
        e(f"v_mfma_f32_32x32x16_bf16 v[{64+16*t}:{79+16*t}], v[{b+4*t}:{b+4*t+3}], v[{b+8}:{b+11}], v[{64+16*t}:{79+16*t}]")
e("s_mov_b32 s37, 0")
e("s_waitcnt vmcnt(4)"); reads1(0); e("s_waitcnt lgkmcnt(0)"); dmaw("s36", 3, 3, 3)
lab("L_loop")
for c in range(1,5):
    cc = c % 4
    e("s_waitcnt vmcnt(4)")
    if c == 4:
        e("s_mov_b32 s40, s41"); e("s_mov_b32 s36, s39"); nextk()
    reads1(cc); mf1(c-1)
    e("s_waitcnt lgkmcnt(0)")
    if c < 4: dmaw("s39", c-1, (c+3)%4, None)
    else: dmaw("s36", 3, 3, None)
e("s_add_u32 s37, s37, 1"); e("s_cmp_lt_u32 s37, 11"); e("s_cbranch_scc1 L_loop")
vm.clear(); vm += [45]*2+[46]*2+[47]*2
for u in range(45,48):
    waitfor(u); reads1(u%4); mf1(u-1); e("s_waitcnt lgkmcnt(0)")
    dmao(2*(u-45)); dmao(2*(u-45)+1)
mf1(47)
dmao(6); dmao(7)
e("s_nop 7"); e("s_nop 7")
e("v_mov_b32 v3, 0x4038aa3b"); e("v_mov_b32 v4, 0xbfb8aa3b")
e("v_lshrrev_b32 v5, 5, v2"); e("v_and_b32 v6, 31, v2"); e(f"v_mul_u32_u24 v6, {XSTR}, v6")
e("v_lshl_add_u32 v6, v5, 3, v6"); e("v_add_u32 v6, s32, v6")
for q in range(4):
    for i in range(4): e(f"v_mul_f32 v{8+i}, v3, v{64+4*q+i}"); e(f"v_mul_f32 v{12+i}, v4, v{80+4*q+i}")
    for i in range(8): e(f"v_exp_f32 v{8+i}, v{8+i}")
    for i in range(8): e(f"v_add_f32 v{8+i}, 1.0, v{8+i}")
    for i in range(8): e(f"v_rcp_f32 v{8+i}, v{8+i}")
    for i in range(4): e(f"v_fma_f32 v{8+i}, v{8+i}, -2.0, 1.0")
    for i in range(4): e(f"v_mul_f32 v{8+i}, v{8+i}, v{12+i}")
    e("v_cvt_pk_bf16_f32 v16, v8, v9"); e("v_cvt_pk_bf16_f32 v17, v10, v11")
    e(f"ds_write_b64 v6, v[16:17] offset:{ZT + 16*q}")
e("s_waitcnt lgkmcnt(0)"); e("s_barrier")
for r in range(64,80): e(f"v_mov_b32 v{r}, 0")
e(f"v_add_u32 v43, {ZT}, v43")
def reads2(u):
    b = FR[u&1]; off = (u%8)*1024
    e(f"ds_read_b64_tr_b16 v[{b}:{b+1}], v42 offset:{off}")
    e(f"ds_read_b64_tr_b16 v[{b+2}:{b+3}], v42 offset:{off+256}")
    e(f"ds_read_b128 v[{b+8}:{b+11}], v43 offset:{u*32}")
def mf2(u):
    b = FR[u&1]
    e(f"v_mfma_f32_32x32x16_bf16 v[64:79], v[{b}:{b+3}], v[{b+8}:{b+11}], v[64:79]")
for u in range(16):
    waitfor(('o',u)); reads2(u)
    if u > 0: mf2(u-1)
    e("s_waitcnt lgkmcnt(0)")
    if u + 8 < 16: dmao(u+8)
mf2(15)
e("s_nop 7"); e("s_nop 7")
e("v_and_b32 v6, 31, v2"); e("v_add_u32 v6, s29, v6"); e("v_lshlrev_b32 v6, 9, v6")
e("v_lshrrev_b32 v5, 5, v2"); e("v_lshl_add_u32 v6, v5, 3, v6"); e("v_add_u32 v6, s32, v6")
for q in range(4):
    b = 64+4*q
    e(f"v_cvt_pk_bf16_f32 v{8+2*q}, v{b}, v{b+1}"); e(f"v_cvt_pk_bf16_f32 v{9+2*q}, v{b+2}, v{b+3}")
    e(f"buffer_store_dwordx2 v[{8+2*q}:{9+2*q}], v6, s[24:27], 0 offen offset:{16*q}")
lab("L_done"); e("s_endpgm")
o += ['.section .rodata,"a"', '.p2align 6', f'.amdhsa_kernel {K}', '  .amdhsa_next_free_vgpr 120',
 '  .amdhsa_next_free_sgpr 48', '  .amdhsa_accum_offset 120', '  .amdhsa_group_segment_fixed_size 0',
 '  .amdhsa_kernarg_size 48', '  .amdhsa_user_sgpr_count 2', '  .amdhsa_user_sgpr_kernarg_segment_ptr 1',
 '  .amdhsa_system_sgpr_workgroup_id_x 1', '.end_amdhsa_kernel']
open('standalone__autoregressive_conv_wavenet__speech.s','w').write('\n'.join(o)+'\n')
```
